```python
import torch

def _softmax(x, axis=-1):
    return torch.softmax(x, dim=axis)
def _gelu(x):
    return torch.nn.functional.gelu(x, approximate="tanh")
def _silu(x):
    return torch.nn.functional.silu(x)
def _sigmoid(x):
    return torch.sigmoid(x)
def _layernorm(x, axis=-1, eps=1e-5):
    m = x.mean(dim=axis, keepdim=True)
    v = x.var(dim=axis, keepdim=True, unbiased=False)
    return (x - m) / torch.sqrt(v + eps)
def _scatter_add(tgt, idx, src, axis=0):
    return tgt.clone().index_add_(axis, idx, src)
def _segment_sum(src, seg, n):
    out = torch.zeros((n,) + src.shape[1:], dtype=src.dtype)
    return out.index_add_(0, seg, src)
def _pad(x, pw):
    flat = tuple(v for pair in reversed(pw) for v in pair)
    return torch.nn.functional.pad(x, flat)

kernel_name = 'standalone__gqa_softmax__near_ridge'

def setup_inputs():

    _w = (lambda a: (lambda t: t.to(torch.bfloat16) if t.is_floating_point() else t)(torch.as_tensor(a)))
    B, Hq, Hkv, Sq, Sk, D = 16, 16, 8, 384, 512, 256
    return {
        "q": _w((lambda *s: torch.randn(*s, dtype=torch.bfloat16) * 0.8)(B, Hq, Sq, D)),
        "k": _w((lambda *s: torch.randn(*s, dtype=torch.bfloat16) * 0.8)(B, Hkv, Sk, D)),
        "v": _w((lambda *s: torch.randn(*s, dtype=torch.bfloat16) * 0.05)(B, Hkv, Sk, D)),
    }

def reference(q, k, v):
    B, Hq, Sq, D = q.shape
    Hkv = k.shape[1]
    rep = Hq // Hkv
    k = (lambda x, n, axis: torch.repeat_interleave(x, n, dim=axis))(k, rep, axis=1)
    v = (lambda x, n, axis: torch.repeat_interleave(x, n, dim=axis))(v, rep, axis=1)
    scale = D ** -0.5
    scores = torch.einsum("bhqd,bhkd->bhqk", q, k) * scale
    p = _softmax(scores, axis=-1)
    return torch.einsum("bhqk,bhkd->bhqd", p, v)
```

```python
from gen_mb import *
import gen_mb
pre = "    v_lshrrev_b32 v6, 1, v4\n    s_mov_b32 s34, 0\n    s_mov_b32 s36, 0x3f803f80\n  s_mov_b32 s37, 0x3db8aa3b\n"
old = gen_mb.filler
def filler2(kind):
    cnt[0] += 1
    c = cnt[0]
    r = 16 + (c % 8) * 2
    if kind == 'p': return f"    v_pk_add_f32 v[{r}:{r+1}], v[{32+(c%4)*2}:{33+(c%4)*2}], v[{40+(c%4)*2}:{41+(c%4)*2}]\n"
    if kind == 'P': return f"    v_pk_fma_f32 v[{r}:{r+1}], v[{32+(c%4)*2}:{33+(c%4)*2}], v[{40+(c%4)*2}:{41+(c%4)*2}], v[{48+(c%4)*2}:{49+(c%4)*2}]\n"
    if kind == 'o': return f"    v_dot2_f32_bf16 v{r}, v{32+c%8}, s36, v{r}\n"
    if kind == 'O': return f"    v_dot2c_f32_bf16 v{r}, s36, v{32+c%8}\n"
    if kind == 'f': return f"    v_fma_f32 v{r}, v{32+c%8}, s37, v{48}\n"
    if kind == 'D':
        return f"    buffer_load_dwordx4 v5, s[16:19], s34 offen lds\n"
    if kind == 'M':
        return f"    s_add_u32 m0, s31, {(c%16)*1024}\n"
    if kind == 'x':
        return f"    s_add_u32 s34, s34, 0x10000\n"
    if kind == 'y':
        return f"    s_and_b32 s34, s34, 0x7ffff\n"
    cnt[0] -= 1
    return old(kind)
gen_mb.filler = filler2
tests = {
    "f_0": [""],
    "f_aa": ["aa"],
    "f_ff": ["ff"],
    "f_vv": ["vv"],
    "f_e": ["e"],
    "f_cc": ["cc"],
    "f_mm": ["mm"],
    "f_p": ["p"],
    "f_pp": ["pp"],
    "f_P": ["P"],
    "f_PP": ["PP"],
    "f_o": ["o"],
    "f_oo": ["oo"],
    "f_O": ["O"],
    "f_OO": ["OO"],
    "f_dma12": ["M", "D", "x", "y", "", "", "", "", "", "", "", ""],
    "f_dma12_vv": ["Mvv", "Dv", "xvv", "yvv", "vv", "vv", "vv", "vv", "vv", "vv", "vv", "vv"],
    "f_dma12_vvD": ["Mvv", "vD", "xvv", "yvv", "vv", "vv", "vv", "vv", "vv", "vv", "vv", "vv"],
    "f_dma6_vv": ["Mvv", "Dv", "xvv", "yvv", "vv", "vv"],
    "f_dma4_vv": ["Mvv", "Dv", "xvv", "yvv"],
    "f_nodma_vv": ["Mvv", "v", "xvv", "yvv", "vv", "vv", "vv", "vv", "vv", "vv", "vv", "vv"],
}
names = []
if __name__ != "__main__": tests = {}
for k, p in tests.items():
    cnt[0] = 0
    make(f"{k}.s", gen_mb.pattern(mfma16, p, 96), 96, pre=pre)
    names.append(f"{k}.s")
if __name__ == "__main__": print(" ".join(names))
```

```python
import sys
HDR = """; NUNITS={nunits}
; @launch grid=({grid},1,1) block=({block},1,1) lds={lds}
.amdgcn_target "amdgcn-amd-amdhsa--gfx950"
.text
.globl mb_kernel
.p2align 8
.type mb_kernel,@function
mb_kernel:
    s_load_dwordx2 s[4:5], s[0:1], 0
    s_load_dwordx2 s[6:7], s[0:1], 40
    s_load_dwordx2 s[16:17], s[0:1], 8
    s_waitcnt lgkmcnt(0)
    s_mov_b32 s8, s4
    s_mov_b32 s9, s5
    s_mov_b32 s10, 50331648
    s_mov_b32 s11, 0x00020000
    s_mov_b32 s12, s6
    s_mov_b32 s13, s7
    s_mov_b32 s14, 0x10000000
    s_mov_b32 s15, 0x00020000
    s_mov_b32 s18, 33554432
    s_mov_b32 s19, 0x00020000
    v_lshlrev_b32 v1, 4, v0          ; tid*16
    s_lshl_b32 s3, s2, 16
    v_add_u32 v2, s3, v1
    v_lshrrev_b32 v3, 6, v0
    s_nop 1
    v_readfirstlane_b32 s30, v3
    v_and_b32 v4, 63, v0
    v_lshlrev_b32 v4, 4, v4          ; lane*16
"""
INIT_REGS = """
"""
FIN = """
    s_memtime s[24:25]
    s_memrealtime s[26:27]
    s_waitcnt lgkmcnt(0)
    s_sub_u32 s24, s24, s20
    s_sub_u32 s26, s26, s22
    v_mov_b32 v8, s24
    v_mov_b32 v9, s26
    v_mov_b32 v10, 0
    v_mov_b32 v11, 0
    s_mul_i32 s3, s2, {wpb}
    s_add_u32 s3, s3, s30
    s_lshl_b32 s3, s3, 4
    v_mov_b32 v12, s3
    v_cmp_eq_u32 vcc, 0, v4
    s_and_saveexec_b64 s[28:29], vcc
    buffer_store_dwordx4 v[8:11], v12, s[12:15], 0 offen
    s_waitcnt vmcnt(0)
s_endpgm
.section .rodata,"a"
.p2align 6
.amdhsa_kernel mb_kernel
  .amdhsa_next_free_vgpr {nfv}
  .amdhsa_next_free_sgpr 102
  .amdhsa_accum_offset 256
  .amdhsa_group_segment_fixed_size 0
  .amdhsa_kernarg_size 48
  .amdhsa_user_sgpr_count 2
  .amdhsa_user_sgpr_kernarg_segment_ptr 1
  .amdhsa_system_sgpr_workgroup_id_x 1
.end_amdhsa_kernel
"""

def make(name, body, nunits_per_iter, iters=200, grid=256, block=256, lds=163840, nfv=512, pre=""):
    s = HDR.format(nunits=nunits_per_iter*iters, grid=grid, block=block, lds=lds)
    for r in range(16, 256, 4):
        s += f"    buffer_load_dwordx4 v[{r}:{r+3}], v2, s[8:11], 0 offen offset:{(r*16)%4096}\n"
    if nfv > 256:
        for r in range(0, 256):
            s += f"    v_accvgpr_write_b32 a{r}, 0\n"
    nw = block // 64
    per = lds // nw // 1024
    s += f"    s_mul_i32 s31, s30, {per*1024}\n"
    s += f"    v_add_u32 v5, s31, v4\n"
    for i in range(per):
        s += f"    s_add_u32 m0, s31, {i*1024}\n    s_mov_b32 s32, {i*1024}\n    buffer_load_dwordx4 v5, s[16:19], s32 offen lds\n"
    s += "    s_waitcnt vmcnt(0)\n    s_barrier\n"
    s += pre
    s += f"    s_mov_b32 s33, {iters}\n"
    s += "    s_memtime s[20:21]\n    s_memrealtime s[22:23]\n    s_waitcnt lgkmcnt(0)\n"
    s += "    .p2align 6\nL_loop:\n"
    s += body
    s += "    s_sub_u32 s33, s33, 1\n    s_cmp_lg_u32 s33, 0\n    s_cbranch_scc1 L_loop\n"
    s += "    s_waitcnt vmcnt(0) lgkmcnt(0)\n    s_nop 15\n"
    s += FIN.format(wpb=nw, nfv=nfv)
    open(name, "w").write(s)

def mfma16(i):
    a = (i % 48) * 4
    A = 64 + (i % 8) * 4
    B = 128 + (i % 24) * 4
    return f"    v_mfma_f32_16x16x32_bf16 a[{a}:{a+3}], v[{A}:{A+3}], v[{B}:{B+3}], a[{a}:{a+3}]\n"
def mfma32(i):
    a = (i % 12) * 16
    A = 64 + (i % 8) * 4
    B = 128 + (i % 24) * 4
    return f"    v_mfma_f32_32x32x16_bf16 a[{a}:{a+15}], v[{A}:{A+3}], v[{B}:{B+3}], a[{a}:{a+15}]\n"

cnt = [0]
def filler(kind):
    cnt[0] += 1
    c = cnt[0]
    r = 16 + (c % 16)
    if kind == 'v': return f"    v_fma_f32 v{r}, v{32+c%8}, v{40+c%8}, v{48+c%8}\n"
    if kind == 'a': return f"    v_add_f32 v{r}, v{32+c%8}, v{40+c%8}\n"
    if kind == 'e': return f"    v_exp_f32 v{r}, v{32+c%8}\n"
    if kind == 'c': return f"    v_cvt_pk_bf16_f32 v{r}, v{32+c%8}, v{40+c%8}\n"
    if kind == 'm': return f"    v_max3_f32 v{r}, v{32+c%8}, v{40+c%8}, v{48+c%8}\n"
    if kind == 's': return f"    s_add_u32 s40, s41, 1\n"
    if kind == 'n': return f"    s_nop 0\n"
    if kind == 'r':
        d = 224 + (c % 8) * 4
        return f"    ds_read_b128 v[{d}:{d+3}], v4 offset:{(c%32)*1024}\n"
    if kind == 't':
        d = 224 + (c % 16) * 2
        return f"    ds_read_b64_tr_b16 v[{d}:{d+1}], v6 offset:{(c%32)*512}\n"
    if kind == 'd':
        return f"    s_add_u32 m0, s31, {(c%16)*1024}\n    s_nop 0\n    buffer_load_dwordx4 v5, s[16:19], s34 offen lds\n"
    if kind == 'w': return "    s_waitcnt lgkmcnt(4)\n"
    raise ValueError(kind)

def pattern(mf, pats, n):
    body = ""
    for i in range(n):
        body += mf(i)
        for ch in pats[i % len(pats)]:
            body += filler(ch)
    return body

if __name__ == "__main__":
    pre = "    v_lshrrev_b32 v6, 1, v4\n    s_mov_b32 s34, 0\n"
    tests = {
        "m16_0": (mfma16, [""]),
        "m16_v": (mfma16, ["v"]),
        "m16_vv": (mfma16, ["vv"]),
        "m16_vvv": (mfma16, ["vvv"]),
        "m16_e": (mfma16, ["e"]),
        "m16_ev": (mfma16, ["ev"]),
        "m16_vr": (mfma16, ["vr"]),
        "m16_vvr": (mfma16, ["vvr", "vv"]),
        "m16_vvt": (mfma16, ["vvt"]),
        "m16_vvs": (mfma16, ["vvs"]),
        "m16_vvn": (mfma16, ["vvn"]),
        "m16_er": (mfma16, ["er", "e"]),
        "m16_et": (mfma16, ["et"]),
        "m16_mix": (mfma16, ["e", "vt", "e", "mc", "vr", "e"]),
        "m32_0": (mfma32, [""]),
        "m32_v5": (mfma32, ["vvvvv"]),
        "m32_v6": (mfma32, ["vvvvvv"]),
        "m32_v7": (mfma32, ["vvvvvvv"]),
        "m32_v6r": (mfma32, ["vvvvvvr"]),
        "m32_v6s": (mfma32, ["vvvvvvs"]),
        "m32_e3": (mfma32, ["eee"]),
        "m32_e3r": (mfma32, ["eeer"]),
    }
    names = []
    for k, (mf, p) in tests.items():
        cnt[0] = 0
        make(f"{k}.s", pattern(mf, p, 96), 96, pre=pre)
        names.append(f"{k}.s")
    print(" ".join(names))
```

```python
from gen_mb import *
import gen_mb
import gen5
pre = gen5.pre
tests = {
    "g_ev_v": ["ev", "v"],
    "g_ev_": ["ev", ""],
    "g_vvv_v": ["vvv", "v"],
    "g_vvvv_": ["vvvv", ""],
    "g_srv": ["srv"],
    "g_wtv": ["wtv"],
    "g_stt": ["stt"],
    "g_ssvv": ["ssvv"],
    "g_se": ["se"],
    "g_sse": ["sse"],
    "g_re_": ["re", ""],
    "g_rt": ["rt", "vv"],
    "g_rsv": ["rsv"],
    "g_vsv": ["vsv"],
    "g_es": ["es"],
    "g_vs": ["vs"],
    "g_vss": ["vss"],
    "g_sD": ["MD", "vv", "xvv", "yvv", "vv", "vv", "vv", "vv", "vv", "vv", "vv", "vv"],
    "g_D": ["Mvv", "D", "xvv", "yvv", "vv", "vv", "vv", "vv", "vv", "vv", "vv", "vv"],
    "g_D_t": ["Mtv", "D", "xtv", "ytv", "tv", "tv", "tv", "tv", "tv", "tv", "tv", "tv"],
    "g_DD": ["Mvv", "D", "Mvv", "D", "xvv", "yvv", "vv", "vv", "vv", "vv", "vv", "vv"],
    "g_D2": ["MD", "MD", "MD", "MD", "xvv", "yvv", "vv", "vv", "vv", "vv", "vv", "vv"]+["vv"]*36,
}
names = []
for k, p in tests.items():
    cnt[0] = 0
    make(f"{k}.s", gen_mb.pattern(mfma16, p, 96), 96, pre=pre)
    names.append(f"{k}.s")
print(" ".join(names))
```
